```python
import torch

def _softmax(x, axis=-1):
    return torch.softmax(x, dim=axis)

def _gelu(x):
    return torch.nn.functional.gelu(x, approximate='tanh')

def _silu(x):
    return torch.nn.functional.silu(x)

def _sigmoid(x):
    return torch.sigmoid(x)

def _layernorm(x, axis=-1, eps=1e-05):
    m = x.mean(dim=axis, keepdim=True)
    v = x.var(dim=axis, keepdim=True, unbiased=False)
    return (x - m) / torch.sqrt(v + eps)

def _scatter_add(tgt, idx, src, axis=0):
    return tgt.clone().index_add_(axis, idx, src)

def _segment_sum(src, seg, n):
    out = torch.zeros((n,) + src.shape[1:], dtype=src.dtype)
    return out.index_add_(0, seg, src)

def _pad(x, pw):
    flat = tuple((v for pair in reversed(pw) for v in pair))
    return torch.nn.functional.pad(x, flat)
kernel_name = 'sequential_preLN__memory_aug_recurrent_mem_tr__glu_gated_swiglu__prompt'

def setup_inputs():

    _w = lambda a: (lambda t: t.to(torch.bfloat16) if t.is_floating_point() else t)(torch.as_tensor(a))

    def _A_setup():
        B, S, Dm = (1, 2048, 512)
        H, Dh = (32, 128)
        M, seg = (8, 32)
        seg = min(seg, S)
        S = S // seg * seg
        return {'x': _w((lambda *s: torch.randn(*s, dtype=torch.bfloat16) * 0.05)(B, S, Dm)), 'mem0': _w((lambda *s: torch.randn(*s, dtype=torch.bfloat16) * 0.2)(B, M, Dm)), 'Wq': _w((lambda *s: torch.randn(*s, dtype=torch.bfloat16) * 1.6)(Dm, H, Dh) * Dm ** (-0.5)), 'Wk': _w((lambda *s: torch.randn(*s, dtype=torch.bfloat16) * 1.6)(Dm, H, Dh) * Dm ** (-0.5)), 'Wv': _w((lambda *s: torch.randn(*s, dtype=torch.bfloat16) * 0.2)(Dm, H, Dh) * Dm ** (-0.5)), 'Wo': _w((lambda *s: torch.randn(*s, dtype=torch.bfloat16) * 0.2)(H, Dh, Dm) * (H * Dh) ** (-0.5)), 'seg_len': seg}
    _A_in = _A_setup()

    def _B_setup():
        B, S, D, F = (1, 2048, 512, 1376)
        return {'x': _w((lambda *s: torch.randn(*s, dtype=torch.bfloat16) * 0.05)(B, S, D)), 'w1': _w((lambda *s: torch.randn(*s, dtype=torch.bfloat16) * 0.2)(D, F) * (2.0 / D) ** 0.5), 'w3': _w((lambda *s: torch.randn(*s, dtype=torch.bfloat16) * 0.2)(D, F) * (2.0 / D) ** 0.5), 'w2': _w((lambda *s: torch.randn(*s, dtype=torch.bfloat16) * 0.2)(F, D) * (2.0 / F) ** 0.5)}
    _B_in = _B_setup()
    return {'A_x': _A_in['x'], 'A_mem0': _A_in['mem0'], 'A_Wq': _A_in['Wq'], 'A_Wk': _A_in['Wk'], 'A_Wv': _A_in['Wv'], 'A_Wo': _A_in['Wo'], 'A_seg_len': _A_in['seg_len'], 'B_x': _B_in['x'], 'B_w1': _B_in['w1'], 'B_w3': _B_in['w3'], 'B_w2': _B_in['w2']}

def reference(A_x, A_mem0, A_Wq, A_Wk, A_Wv, A_Wo, A_seg_len, B_x, B_w1, B_w3, B_w2):

    def _A_ref(x, mem0, Wq, Wk, Wv, Wo, seg_len):
        B, S, Dm = x.shape
        H, Dh = (Wq.shape[1], Wq.shape[2])
        M = mem0.shape[1]
        scale = Dh ** (-0.5)
        n_seg = S // seg_len
        L = M + seg_len
        idx = torch.arange(L)
        mask = (idx[:, None] < M) | (idx[:, None] >= idx[None, :])
        mem = mem0
        outs = []
        for s in range(n_seg):
            xs = x[:, s * seg_len:(s + 1) * seg_len, :].clone()
            h = torch.concatenate([mem, xs], axis=1)
            q = torch.einsum('btd,dhe->bhte', h, Wq)
            k = torch.einsum('btd,dhe->bhte', h, Wk)
            v = torch.einsum('btd,dhe->bhte', h, Wv)
            scores = torch.einsum('bhqe,bhke->bhqk', q, k) * scale
            scores = torch.where(mask[None, None], scores, -1000000000.0)
            p = _softmax(scores, axis=-1)
            o = torch.einsum('bhqk,bhke->bhqe', p, v)
            o = torch.einsum('bhte,hed->btd', o, Wo)
            mem = o[:, :M, :].clone()
            outs.append(o[:, M:, :])
        return torch.concatenate(outs, axis=1)

    def _B_ref(x, w1, w3, w2):
        gate = torch.einsum('bsd,df->bsf', x, w1)
        up = torch.einsum('bsd,df->bsf', x, w3)
        h = _silu(gate) * up
        out = torch.einsum('bsf,fd->bsd', h, w2)
        return out
    x = A_x
    h = x + _A_ref(_layernorm(x, axis=-1), A_mem0, A_Wq, A_Wk, A_Wv, A_Wo, A_seg_len)
    h2 = h + _B_ref(_layernorm(h, axis=-1), B_w1, B_w3, B_w2)
    return h2
```

```python
import re

REG_RE = re.compile(r'^(-|abs\()?([vas])(?:(\d+)|\[(\d+):(\d+)\])\)?$')
TRANS = ('v_exp_f32', 'v_log_f32', 'v_rcp_f32', 'v_rsq_f32', 'v_sqrt_f32', 'v_sin_f32', 'v_cos_f32')


def regs_of(op):
    op = op.strip()
    if op in ('vcc', 'vcc_lo', 'vcc_hi'):
        return {('vcc', 0)}
    if op in ('exec', 'exec_lo', 'exec_hi'):
        return {('exec', 0)}
    if op == 'm0':
        return {('m0', 0)}
    m = REG_RE.match(op)
    if not m:
        return set()
    k = m.group(2)
    if m.group(3) is not None:
        return {(k, int(m.group(3)))}
    return {(k, i) for i in range(int(m.group(4)), int(m.group(5)) + 1)}


class Ins:
    def __init__(self, text):
        self.text = text
        t = text.split(';')[0].strip()
        self.is_label = t.endswith(':')
        self.is_dir = t.startswith('.')
        self.op = ''
        self.ops = []
        self.mods = ''
        self.w = set()
        self.r = set()
        self.kind = 'none'
        self.ws = 0
        if not t or self.is_label or self.is_dir:
            return
        parts = t.split(None, 1)
        self.op = parts[0]
        rest = parts[1] if len(parts) > 1 else ''
        ops, cur, depth = [], '', 0
        for ch in rest:
            if ch in '[(':
                depth += 1
            if ch in '])':
                depth -= 1
            if ch == ',' and depth == 0:
                ops.append(cur.strip())
                cur = ''
            else:
                cur += ch
        if cur.strip():
            ops.append(cur.strip())
        if ops:
            sp = ops[-1].split(None, 1)
            ops[-1] = sp[0]
            self.mods = sp[1] if len(sp) > 1 else ''
        self.ops = ops
        self.ws = 1
        op = self.op
        R = [regs_of(o) for o in ops]
        U = lambda l: set().union(*l) if l else set()
        if op == 's_nop':
            self.kind = 'nop'
            self.ws = int(ops[0], 0) + 1
        elif op.startswith('v_mfma') or op.startswith('v_smfmac'):
            self.kind = 'mfma'
            self.passes = 8 if '32x32' in op else 4
            self.D = R[0]
            self.A, self.B = R[1], R[2]
            if op.startswith('v_smfmac'):
                self.C = R[0]
                self.AB = R[1] | R[2] | R[3]
            else:
                self.C = R[3]
                self.AB = R[1] | R[2]
            self.w = set(R[0])
            self.r = self.AB | self.C
        elif op.startswith('v_'):
            self.kind = 'valu'
            self.trans = any(op.startswith(x) for x in TRANS)
            self.dpp = ('_dpp' in op) or ('quad_perm' in self.mods) or ('row_' in self.mods)
            self.perm = op.startswith('v_permlane')
            self.rdl = op.startswith('v_readlane') or op.startswith('v_readfirstlane')
            if self.perm:
                self.w = R[0] | R[1]
                self.r = R[0] | R[1]
            elif op.startswith('v_cmp'):
                self.w = set(R[0])
                self.r = U(R[1:])
            elif '_co_' in op:
                self.w = R[0] | R[1]
                self.r = U(R[2:])
            else:
                self.w = set(R[0])
                self.r = U(R[1:])
                if op.startswith('v_fmac') or op.startswith('v_writelane') or self.dpp or 'sdwa' in op:
                    self.r |= R[0]
                if op.startswith('v_cndmask') and len(ops) == 3:
                    self.r |= {('vcc', 0)}
        elif op.startswith('buffer_') or op.startswith('global_'):
            self.kind = 'vmem'
            self.lds = (' lds' in ' ' + self.mods) or ('_lds_' in op)
            self.wide = False
            self.data = set()
            if op in ('buffer_wbl2', 'buffer_inv'):
                pass
            elif self.lds:
                self.r = U(R) | {('m0', 0)}
            elif '_load' in op:
                self.w = set(R[0])
                self.r = U(R[1:])
            else:
                self.r = U(R)
                self.data = R[0] if op.startswith('buffer_') else R[1]
                self.wide = op.endswith('x3') or op.endswith('x4')
                if 'atomic' in op and 'sc0' in self.mods:
                    self.w = set(R[0])
        elif op.startswith('ds_'):
            self.kind = 'ds'
            if op.startswith('ds_read') or 'permute' in op or 'swizzle' in op:
                self.w = set(R[0])
                self.r = U(R[1:])
            else:
                self.r = U(R)
        elif op.startswith('s_'):
            self.kind = 'salu'
            if op.startswith('s_cbranch') or op == 's_branch':
                self.kind = 'branch'
                self.target = ops[0]
            elif op.startswith('s_cmp') or op in ('s_waitcnt', 's_barrier', 's_endpgm', 's_setprio', 's_sleep'):
                self.r = U(R)
            else:
                self.w = set(R[0]) if R else set()
                self.r = U(R[1:])
                if 'saveexec' in op:
                    self.w |= {('exec', 0)}
        else:
            raise ValueError('unknown op ' + op)


def need(p, c):
    n = 0
    vg = lambda s: {x for x in s if x[0] in 'va'}
    sg = lambda s: {x for x in s if x[0] in ('s', 'vcc')}
    if p.kind == 'valu':
        pw = vg(p.w)
        if c.kind == 'mfma' and pw & c.r:
            n = max(n, 2)
        if c.kind == 'valu':
            if p.trans and not c.trans and pw & c.r:
                n = max(n, 1)
            if (c.dpp or c.perm) and pw & c.r:
                n = max(n, 2)
            if c.rdl and pw & c.r:
                n = max(n, 1)
            if 'sdwa' in p.op and pw & (c.r | c.w):
                n = max(n, 1)
        ps = sg(p.w)
        if ps:
            if c.kind == 'valu' and ps & c.r:
                n = max(n, 4 if (c.rdl or c.op.startswith('v_writelane')) else 2)
            if c.kind == 'vmem' and ps & c.r:
                n = max(n, 5)
            if c.kind == 'mfma' and ps & c.r:
                n = max(n, 2)
    elif p.kind == 'mfma':
        big = p.passes == 8
        if c.kind == 'mfma':
            if p.D & c.AB:
                n = max(n, 12 if big else 8)
            if p.D & c.C:
                if not (p.D == c.C and p.passes == c.passes):
                    n = max(n, 10 if big else 6)
            elif p.D & c.D:
                n = max(n, 10 if big else 6)
        elif c.kind in ('valu', 'vmem', 'ds'):
            if p.D & (c.r | c.w):
                n = max(n, 12 if big else 8)
            if c.kind == 'valu' and p.C & c.w:
                n = max(n, 7 if big else 3)
    elif p.kind == 'vmem':
        if p.wide and p.data & c.w:
            n = max(n, 2 if c.kind in ('valu', 'mfma') else 1)
    elif p.kind == 'salu':
        if ('m0', 0) in p.w and c.kind == 'vmem' and c.lds:
            n = max(n, 1)
    if c.kind == 'valu' and c.dpp and p.kind in ('vmem', 'ds') and False:
        pass
    return n


WINDOW = 14


class Asm:
    def __init__(self):
        self.lines = []
        self.uid = 0

    def __call__(self, text):
        for ln in text.split('\n'):
            ln = ln.strip()
            if ln:
                self.lines.append(ln)

    def label(self, name):
        self.lines.append(name + ':')

    def new_label(self, base='L'):
        self.uid += 1
        return f'{base}_{self.uid}'

    def finish(self):
        ins = [Ins(l) for l in self.lines]
        prev = None
        labels = {}
        for x in ins:
            x.prev = prev
            x.srcs = []
            prev = x
            if x.is_label:
                labels[x.text.split(';')[0].strip()[:-1]] = x
        for x in ins:
            if x.kind == 'branch':
                labels[x.target].srcs.append(x)
        last = ins[-1]
        self.nops_inserted = 0
        for _ in range(4):
            changed = False
            for c in ins:
                if c.kind not in ('valu', 'mfma', 'vmem', 'ds'):
                    continue
                worst = 0
                stack = [(c.prev, 0, False)]
                seen = set()
                while stack:
                    p, dist, via_branch = stack.pop()
                    while p is not None and dist < WINDOW:
                        if (id(p), dist) in seen:
                            break
                        seen.add((id(p), dist))
                        if p.op in ('s_branch', 's_endpgm') and not via_branch:
                            break
                        via_branch = False
                        if p.is_label:
                            for b in p.srcs:
                                stack.append((b, dist, True))
                        elif p.kind != 'none':
                            worst = max(worst, need(p, c) - dist)
                            dist += p.ws
                        p = p.prev
                if worst > 0:
                    n = Ins(f's_nop {worst - 1}')
                    n.prev = c.prev
                    n.srcs = []
                    c.prev = n
                    changed = True
                    self.nops_inserted += 1
            if not changed:
                break
        else:
            raise RuntimeError('hazard pass did not converge')
        seq = []
        x = last
        while x is not None:
            seq.append(x)
            x = x.prev
        seq.reverse()
        res = []
        for x in seq:
            res.append(x.text if (x.is_label or x.is_dir) else '    ' + x.text)
        return '\n'.join(res) + '\n'
```

```python
LOG2E = 1.4426950408889634
import struct


def f32hex(x):
    return '0x%08x' % struct.unpack('<I', struct.pack('<f', x))[0]


CSC = f32hex(128 ** -0.5 * LOG2E)


def role_R(G):
    a, srd, vr, ar = G.a, G.srd, G.vr, G.ar
    W, H = G.S_WAVE, G.S_MEM
    V_LANE, V_G, V_C, V_L16, V_L4 = G.V_LANE, G.V_G, G.V_C, G.V_L16, G.V_L4
    WS = srd('WS')
    WOL, MS, QX, KX2, OX, KVS = 0, 131072, 139264, 141312, 143360, 145408
    a.label('L_role_R')
    a(f's_lshl_b32 s64, {H}, 2')
    a(f's_add_u32 s64, s64, {W}')
    for i in range(4):
        a(f'v_mov_b32 v{8 + i}, -1')
    a('s_lshl_b32 s9, s64, 11')
    a(f's_add_u32 s9, s9, {G.MB1}')
    a('s_add_u32 s10, s9, 0x40000')
    for so in ('s9', 's10'):
        for o in (0, 1024):
            a(f'buffer_store_dwordx4 v[8:11], {V_L16}, {WS}, {so} offen offset:{o} sc1')
    a('s_lshl_b32 s9, s64, 7')
    a(f's_add_u32 s9, s9, {G.MB2}')
    a('s_mov_b64 exec, 0xff')
    a(f'buffer_store_dwordx4 v[8:11], {V_L16}, {WS}, s9 offen sc1')
    a('s_mov_b64 exec, -1')
    a(f's_lshl_b32 s65, {H}, 7')
    a(f's_lshl_b32 s9, {W}, 2')
    a('s_add_u32 s65, s65, s9')
    a(f's_add_u32 s65, s65, {G.RP}')
    G.store_flag('0', 's65', 'v6')
    G.publish_table('v6')
    if 'R' not in G.ROLES:
        a('s_endpgm')
        return
    a(f'v_lshrrev_b32 v6, 1, {V_G}')
    a('v_lshlrev_b32 v6, 14, v6')
    a(f'v_and_b32 v7, 1, {V_G}')
    a('v_lshl_add_u32 v6, v7, 12, v6')
    a(f'v_lshl_add_u32 v6, {V_C}, 4, v6')
    a(f's_lshl_b32 s9, {H}, 17')
    a(f's_lshl_b32 s10, {W}, 8')
    a('s_add_u32 s9, s9, s10')
    a('v_add_u32 v6, s9, v6')
    a(f's_lshl_b32 s9, {W}, 15')
    VWO = 'v12'
    a(f'v_add_u32 {VWO}, s9, {V_L16}')
    a(f's_mov_b32 s12, {G.SEL_LO}')
    a(f's_mov_b32 s13, {G.SEL_HI}')
    for k2 in range(2):
        for jb in range(16):
            jh, jl = jb >> 3, jb & 7
            e = 64 * k2 + 32 * jh + 8 * ((jl >> 1) & 1) + 2 * (jl >> 2) + (jl & 1)
            a(f's_mov_b32 s14, {e * 1024}')
            a(f'buffer_load_dwordx4 {vr(128 + 64 * k2 + 4 * jb, 4)}, v6, {srd("WO")}, s14 offen')
    for k2 in range(2):
        a(f's_waitcnt vmcnt({16 * (1 - k2)})')
        for t in range(8):
            o = 16 + 8 * (t & 1)
            for p in range(8):
                lo = 128 + 64 * k2 + 4 * (2 * p) + (t >> 1)
                hi = lo + 4
                a(f'v_perm_b32 v{o + p}, v{hi}, v{lo}, {"s13" if t & 1 else "s12"}')
            for h8 in range(2):
                a(f'ds_write_b128 {VWO}, {vr(o + 4 * h8, 4)} offset:{(t * 2 + k2) * 2048 + h8 * 1024}')
    a(f'v_lshrrev_b32 v6, 1, {V_G}')
    a('v_lshlrev_b32 v6, 19, v6')
    a(f'v_and_b32 v7, 1, {V_G}')
    a('v_lshl_add_u32 v6, v7, 17, v6')
    a(f'v_lshl_add_u32 v6, {V_C}, 2, v6')
    a(f's_lshl_b32 s9, {H}, 8')
    a(f's_lshl_b32 s10, {W}, 6')
    a('s_add_u32 s9, s9, s10')
    a('v_add_u32 v6, s9, v6')

    def wreg(mt, kk, tau, n=8):
        i = ((mt * 8 + kk) * 2 + tau) * 8
        return ar(i, n) if i < 256 else vr(i - 128, n)

    def wreg1(mt, kk, tau, p):
        i = ((mt * 8 + kk) * 2 + tau) * 8 + p
        return f'a{i}' if i < 256 else f'v{i - 128}'

    groups = []
    for mt, nm in enumerate(('WQ', 'WK', 'WV')):
        for kk in range(8):
            loads, outs = [], []
            for jb in range(16):
                jh, jl = jb >> 3, jb & 7
                d = 256 * (kk & 1) + 128 * jh + 32 * ((jl >> 1) & 1) + 8 * (jl >> 2) + 2 * (kk >> 1) + (jl & 1)
                loads.append((srd(nm), 'v6', d * 8192))
            for tau in range(2):
                for p in range(8):
                    outs.append((wreg1(mt, kk, tau, p), 2 * p + 1, 2 * p, tau))
            groups.append(dict(loads=loads, outs=outs))
    a('s_waitcnt lgkmcnt(0)')
    G.load_dword_tiles(groups, 16)

    VIDX, VMS, VM1S, VM1L, VM2S, VQW, VQR, VKR, VOW, VKP, VVM, VDMA = ('v%d' % i for i in (6, 7, 8, 9, 10, 11, 13, 14, 15, 16, 17, 18))
    SEL = 20
    a(f'v_and_b32 v24, 1, {V_LANE}')
    a('v_mov_b32 v25, 0x4444')
    a('v_mov_b32 v26, 0xeeee')
    a('v_cmp_eq_u32 vcc, 1, v24')
    a(f'v_cndmask_b32 {VIDX}, v25, v26, vcc')
    a(f'v_add_u32 {VMS}, {MS}, {V_L16}')
    a(f'v_lshlrev_b32 v24, 12, {V_G}')
    a(f'v_lshrrev_b32 v25, 3, {V_C}')
    a('v_lshl_add_u32 v24, v25, 11, v24')
    a(f'v_and_b32 v25, 7, {V_C}')
    a('v_lshl_add_u32 v24, v25, 3, v24')
    a(f's_lshl_b32 s9, {W}, 14')
    a(f's_lshl_b32 s10, {H}, 6')
    a('s_add_u32 s9, s9, s10')
    a(f'v_add_u32 {VM1S}, s9, v24')
    a(f'v_lshlrev_b32 v24, 8, {V_G}')
    a(f'v_and_b32 v25, 3, {V_C}')
    a('v_lshl_add_u32 v24, v25, 6, v24')
    a(f'v_lshrrev_b32 v25, 2, {V_C}')
    a('v_lshl_add_u32 v24, v25, 4, v24')
    a('s_lshl_b32 s9, s64, 11')
    a(f'v_add_u32 {VM1L}, s9, v24')
    a('s_lshr_b32 s9, s64, 5')
    a('s_lshl_b32 s9, s9, 11')
    a('s_bfe_u32 s10, s64, 0x10004')
    a('s_lshl_b32 s10, s10, 10')
    a('s_add_u32 s9, s9, s10')
    a('s_bfe_u32 s10, s64, 0x10003')
    a('s_lshl_b32 s10, s10, 9')
    a('s_add_u32 s9, s9, s10')
    a('s_and_b32 s10, s64, 1')
    a('s_lshl_b32 s10, s10, 8')
    a('s_add_u32 s9, s9, s10')
    a('s_bfe_u32 s10, s64, 0x20001')
    a('s_lshl_b32 s10, s10, 6')
    a('s_add_u32 s9, s9, s10')
    a(f'v_bfe_u32 v24, {V_C}, 1, 1')
    a('v_lshlrev_b32 v24, 5, v24')
    a(f'v_lshrrev_b32 v25, 1, {V_G}')
    a('v_lshl_add_u32 v24, v25, 4, v24')
    a(f'v_and_b32 v25, 1, {V_G}')
    a('v_lshl_add_u32 v24, v25, 3, v24')
    a(f'v_bfe_u32 v25, {V_C}, 2, 1')
    a('v_lshl_add_u32 v24, v25, 2, v24')
    a(f'v_add_u32 {VM2S}, s9, v24')
    a(f's_lshr_b32 s9, {W}, 1')
    a('s_lshl_b32 s9, s9, 10')
    a(f's_and_b32 s10, {W}, 1')
    a('s_lshl_b32 s10, s10, 8')
    a('s_add_u32 s9, s9, s10')
    a(f's_add_u32 s9, s9, {QX}')
    a(f'v_bfe_u32 v24, {V_C}, 2, 1')
    a('v_lshlrev_b32 v24, 9, v24')
    a(f'v_lshrrev_b32 v25, 3, {V_C}')
    a('v_lshl_add_u32 v24, v25, 7, v24')
    a(f'v_lshl_add_u32 v24, {V_G}, 5, v24')
    a(f'v_and_b32 v25, 3, {V_C}')
    a('v_lshl_add_u32 v24, v25, 2, v24')
    a(f'v_add_u32 {VQW}, s9, v24')
    a(f'v_lshlrev_b32 v24, 7, {V_G}')
    a(f'v_and_b32 v25, 7, {V_C}')
    a('v_lshl_add_u32 v25, v25, 4, v24')
    a(f'v_add_u32 {VQR}, {QX}, v25')
    a(f'v_lshrrev_b32 v25, 2, {V_C}')
    a('v_lshl_add_u32 v24, v25, 5, v24')
    a(f'v_and_b32 v25, 1, {V_C}')
    a('v_lshl_add_u32 v24, v25, 4, v24')
    a(f'v_add_u32 {VKR}, {KX2}, v24')
    a(f's_lshl_b32 s9, {W}, 9')
    a(f'v_add_u32 {VKP}, s9, {VKR}')
    a(f's_lshl_b32 s9, {W}, 9')
    a(f's_add_u32 s9, s9, {OX}')
    a(f'v_lshrrev_b32 v24, 1, {V_G}')
    a('v_lshlrev_b32 v24, 8, v24')
    a(f'v_and_b32 v25, 1, {V_G}')
    a('v_lshl_add_u32 v24, v25, 4, v24')
    a(f'v_and_b32 v25, 7, {V_C}')
    a('v_lshl_add_u32 v24, v25, 5, v24')
    a(f'v_add_u32 {VOW}, s9, v24')
    a(f's_lshl_b32 s9, {W}, 9')
    a('s_add_u32 s9, s9, 4096')
    a(f'v_lshlrev_b32 v24, 3, {V_LANE}')
    a(f'v_add_u32 {VVM}, s9, v24')
    a(f's_lshl_b32 s66, {W}, 12')
    a(f'v_add_u32 {VDMA}, s66, {V_L16}')
    a(f's_add_u32 s66, s66, {KVS}')
    a(f's_lshl_b32 s67, {W}, 10')
    for p in range(4):
        a('v_mov_b32 v24, 0x3f80')
        a('v_mov_b32 v25, 0x3f800000')
        a(f'v_cmp_eq_u32 vcc, {2 * p}, {V_C}')
        a(f'v_cndmask_b32 v{SEL + p}, 0, v24, vcc')
        a(f'v_cmp_eq_u32 vcc, {2 * p + 1}, {V_C}')
        a(f'v_cndmask_b32 v{SEL + p}, v{SEL + p}, v25, vcc')
    a(f'v_lshrrev_b32 v24, 1, {V_C}')
    a('v_lshlrev_b32 v24, 10, v24')
    a(f'v_lshl_add_u32 v24, {V_G}, 7, v24')
    a(f'v_and_b32 v25, 1, {V_C}')
    a('v_lshl_add_u32 v24, v25, 6, v24')
    a(f's_and_b32 s9, {W}, 1')
    a('s_lshl_b32 s9, s9, 9')
    a(f's_lshr_b32 s10, {W}, 1')
    a('s_lshl_b32 s10, s10, 2')
    a('s_add_u32 s9, s9, s10')
    for hb in range(2):
        for d in range(4):
            a(f'buffer_load_dword v{32 + 4 * hb + d}, v24, {srd("MEM0")}, s9 offen offset:{d * 16 + hb * 8}')
    a(f'v_add_u32 v25, s67, {VMS}')
    a('s_waitcnt vmcnt(0)')
    a('ds_write_b128 v25, v[32:35]')
    a('ds_write_b128 v25, v[36:39] offset:4096')
    G.wait_table(V_L4, 'v24', 'v26')
    VKF = 'v19'
    a(f'v_and_b32 v24, 3, {V_LANE}')
    a('v_lshlrev_b32 v24, 2, v24')
    a(f's_lshl_b32 s9, {H}, 7')
    a(f's_add_u32 s9, s9, {G.KVP}')
    a(f'v_add_u32 {VKF}, s9, v24')
    a('s_mov_b32 s68, 0')
    a(f's_lshl_b32 s69, {H}, 14')
    a(f's_add_u32 s69, s69, {G.KVF}')
    a(f's_lshl_b32 s70, {H}, 13')
    a(f's_add_u32 s70, s70, {G.KMF}')
    a(f's_mov_b32 s71, {CSC}')

    def dma_kv(seg_sgpr):
        a(f's_lshr_b32 s9, {seg_sgpr}, 1')
        a('s_add_u32 s9, s9, 1')
        a(f's_and_b32 s10, {seg_sgpr}, 1')
        a('s_lshl_b32 s10, s10, 4')
        G.wait_flags(VKF, 'v24', 's9', 's10')
        a('s_mov_b32 m0, s66')
        for i in range(4):
            a(f'buffer_load_dwordx4 {VDMA}, {WS}, s69 offen offset:{1024 * i} sc1 lds')
        a('s_add_u32 s69, s69, 0x80000')

    dma_kv('s68')
    a('s_waitcnt vmcnt(0)')
    a(f's_cmp_lg_u32 {G.S_FAR}, 0')
    a('s_cbranch_scc1 L_R_far')

    MF, KXR, VX, AQ, AK, AV, QB = 32, 64, 96, 104, 112, 120, 0
    for far in (0, 1):
        sc = ' sc1' if far else ''
        tag = 'far' if far else 'near'
        a.label(f'L_R_{tag}')
        a('s_waitcnt lgkmcnt(0)')
        a('s_barrier')
        for kk in range(8):
            a(f'ds_read_b128 {vr(MF + 4 * kk, 4)}, {VMS} offset:{kk * 1024}')
        for i in range(24):
            a(f'v_mov_b32 v{AQ + i}, 0')
        for mt, acc in ((0, AQ), (1, AK)):
            for kk in range(8):
                if mt == 0:
                    a(f's_waitcnt lgkmcnt({7 - kk})')
                for tau in range(2):
                    a(f'v_smfmac_f32_16x16x64_bf16 {vr(acc + 4 * tau, 4)}, {vr(MF + 4 * kk, 4)}, {wreg(mt, kk, tau)}, {VIDX}')
            if mt == 0:
                for i in range(8):
                    a(f'ds_read_b128 {vr(KXR + 4 * i, 4)}, {VMS} offset:{KVS - MS + i * 1024}')
                a(f'v_lshlrev_b32 v24, 1, s67' if False else f's_lshl_b32 s9, s67, 1')
                a(f'v_add_u32 v24, s9, {VMS}')
                for tau in range(2):
                    a(f'ds_read_b128 {vr(VX + 4 * tau, 4)}, v24 offset:{KVS - MS + 8192 + tau * 1024}')
        for kk in range(8):
            for tau in range(2):
                a(f'v_smfmac_f32_16x16x64_bf16 {vr(AV + 4 * tau, 4)}, {vr(MF + 4 * kk, 4)}, {wreg(2, kk, tau)}, {VIDX}')
        for acc, off in ((AQ, 0), (AK, KX2 - QX)):
            a(f'v_add_f32 v{acc}, v{acc}, v{acc + 1}')
            a(f'v_add_f32 v{acc + 2}, v{acc + 2}, v{acc + 3}')
            a(f'v_add_f32 v{acc + 4}, v{acc + 4}, v{acc + 5}')
            a(f'v_add_f32 v{acc + 6}, v{acc + 6}, v{acc + 7}')
            a(f'v_cvt_pk_bf16_f32 v{acc}, v{acc}, v{acc + 4}')
            a(f'v_cvt_pk_bf16_f32 v{acc + 2}, v{acc + 2}, v{acc + 6}')
            a(f'ds_write_b32 {VQW}, v{acc} offset:{off}')
            a(f'ds_write_b32 {VQW}, v{acc + 2} offset:{off + 16}')
        a(f'v_add_f32 v{AV}, v{AV}, v{AV + 1}')
        a(f'v_add_f32 v{AV + 2}, v{AV + 2}, v{AV + 3}')
        a(f'v_add_f32 v{AV + 4}, v{AV + 4}, v{AV + 5}')
        a(f'v_add_f32 v{AV + 6}, v{AV + 6}, v{AV + 7}')
        a(f'v_cvt_pk_bf16_f32 v{AV}, v{AV}, v{AV + 2}')
        a(f'v_cvt_pk_bf16_f32 v{AV + 2}, v{AV + 4}, v{AV + 6}')
        a(f'v_mov_b32 v{AV + 1}, 0')
        a(f'v_mov_b32 v{AV + 3}, 0')
        a(f'v_mov_b32 v{AV + 4}, v{AV}')
        a(f'v_mov_b32 v{AV + 5}, v{AV + 2}')
        a('s_waitcnt lgkmcnt(0)')
        a('s_barrier')
        QB_, KA = MF, MF + 16
        for k4 in range(4):
            a(f'ds_read_b128 {vr(QB_ + 4 * k4, 4)}, {VQR} offset:{k4 * 512}')
        for k4 in range(4):
            a(f'ds_read_b128 {vr(KA + 4 * k4, 4)}, {VKR} offset:{k4 * 512}')
        a(f'ds_read_b128 v[28:31], {VKP}')
        G.store_flag('s68', 's65', 'v24')
        a(f'buffer_store_dwordx2 {vr(AV + 4, 2)}, {VVM}, {WS}, s70 offen sc1')
        a('s_waitcnt lgkmcnt(0)')
        a('s_add_u32 s9, s70, s67')
        a(f'buffer_store_dwordx4 v[28:31], {V_L16}, {WS}, s9 offen sc1')
        a('s_add_u32 s70, s70, 0x40000')
        a('s_cmp_eq_u32 s68, 63')
        a(f's_cbranch_scc1 L_R_done')
        a('s_add_u32 s72, s68, 1')
        dma_kv('s72')
        for k4 in range(4):
            for rt in range(2):
                d = vr(AQ + 4 * rt, 4)
                a(f'v_mfma_f32_16x16x32_bf16 {d}, {vr(KXR + 4 * (rt * 4 + k4), 4)}, {vr(QB_ + 4 * k4, 4)}, {d if k4 else 0}')
            d = vr(AK, 4)
            a(f'v_mfma_f32_16x16x32_bf16 {d}, {vr(KA + 4 * k4, 4)}, {vr(QB_ + 4 * k4, 4)}, {d if k4 else 0}')
        S = [f'v{AQ + i}' for i in range(8)] + [f'v{AK}', f'v{AK + 1}']
        a(f'v_max3_f32 v24, {S[0]}, {S[1]}, {S[2]}')
        a(f'v_max3_f32 v25, {S[3]}, {S[4]}, {S[5]}')
        a(f'v_max3_f32 v24, v24, {S[6]}, {S[7]}')
        a(f'v_max3_f32 v25, v25, {S[8]}, {S[9]}')
        a('v_max_f32 v24, v24, v25')
        G.xrow_allreduce('v_max_f32', 'v24', 'v25')
        a('v_mul_f32 v24, s71, v24')
        for x in S:
            a(f'v_fma_f32 {x}, {x}, s71, -v24')
        for x in S:
            a(f'v_exp_f32 {x}, {x}')
        for p in range(4):
            a(f'v_cvt_pk_bf16_f32 v{28 + p}, {S[2 * p]}, {S[2 * p + 1]}')
        a(f'v_cvt_pk_bf16_f32 v26, {S[8]}, {S[9]}')
        a('v_mov_b32 v27, 0')
        OA = KXR
        for tau in range(2):
            a(f'v_mfma_f32_16x16x32_bf16 {vr(OA + 4 * tau, 4)}, {vr(VX + 4 * tau, 4)}, v[28:31], 0')
        for tau in range(2):
            d = vr(OA + 4 * tau, 4)
            a(f'v_mfma_f32_16x16x16_bf16 {d}, {vr(AV + 2 * tau, 2)}, v[26:27], {d}')
        a(f'v_add_f32 v24, {S[0]}, {S[1]}')
        a(f'v_add_f32 v25, {S[2]}, {S[3]}')
        for i in (4, 6, 8):
            a(f'v_add_f32 v24, v24, {S[i]}')
            a(f'v_add_f32 v25, v25, {S[i + 1]}')
        a('v_add_f32 v24, v24, v25')
        G.xrow_allreduce('v_add_f32', 'v24', 'v25')
        a('v_rcp_f32 v24, v24')
        for i in range(8):
            a(f'v_mul_f32 v{OA + i}, v{OA + i}, v24')
        for r in range(4):
            a(f'v_cvt_pk_bf16_f32 v{28 + r}, v{OA + r}, v{OA + 4 + r}')
        a(f'ds_write_b128 {VOW}, v[28:31]')
        a('s_waitcnt lgkmcnt(0)')
        a('s_barrier')
        OF = VX
        for k2 in range(2):
            a(f'ds_read_b128 {vr(OF + 4 * k2, 4)}, {VMS} offset:{OX - MS + k2 * 1024}')
        a('s_and_b32 s9, s68, 1')
        a('s_lshl_b32 s73, s9, 18')
        a(f's_add_u32 s73, s73, {G.MB1}')
        a('s_lshl_b32 s74, s9, 13')
        a(f's_add_u32 s74, s74, {G.MB2}')
        a('s_xor_b32 s75, s74, 0x2000')
        WB = MF
        def rd_batch(b):
            for tt in range(2):
                for k2 in range(2):
                    for h8 in range(2):
                        r = WB + 32 * (b & 1) + (tt * 2 + k2) * 8 + 4 * h8
                        a(f'ds_read_b128 {vr(r, 4)}, {VWO} offset:{((2 * b + tt) * 2 + k2) * 2048 + h8 * 1024}')
        rd_batch(0)
        rd_batch(1)
        a('s_mov_b32 s10, s73')
        for b in range(4):
            acc = AQ + 8 * (b & 1)
            for i in range(8):
                a(f'v_mov_b32 v{acc + i}, 0')
            a(f's_waitcnt lgkmcnt({8 if b < 3 else 0})')
            for tt in range(2):
                for k2 in range(2):
                    r = WB + 32 * (b & 1) + (tt * 2 + k2) * 8
                    a(f'v_smfmac_f32_16x16x64_bf16 {vr(acc + 4 * tt, 4)}, {vr(OF + 4 * k2, 4)}, {vr(r, 8)}, {VIDX}')
            if b + 2 < 4:
                rd_batch(b + 2)
            a(f'v_add_f32 v{acc}, v{acc}, v{acc + 1}')
            a(f'v_add_f32 v{acc + 2}, v{acc + 2}, v{acc + 3}')
            a(f'v_add_f32 v{acc + 4}, v{acc + 4}, v{acc + 5}')
            a(f'v_add_f32 v{acc + 6}, v{acc + 6}, v{acc + 7}')
            t0 = 24 + 2 * (b & 1)
            a(f'v_cvt_pk_bf16_f32 v{t0}, v{acc}, v{acc + 4}')
            a(f'v_cvt_pk_bf16_f32 v{t0 + 1}, v{acc + 2}, v{acc + 6}')
            a(f'v_min_u32 v{t0}, -2, v{t0}')
            a(f'v_min_u32 v{t0 + 1}, -2, v{t0 + 1}')
            a(f'buffer_store_dwordx2 {vr(t0, 2)}, {VM1S}, {WS}, s10 offen{sc}')
            a('s_add_u32 s10, s10, 0x10000')
        L, D = a.new_label('h1'), a.new_label('h1d')
        a.label(L)
        a(f'buffer_load_dwordx4 v[32:35], {VM1L}, {WS}, s73 offen sc1')
        a(f'buffer_load_dwordx4 v[36:39], {VM1L}, {WS}, s73 offen offset:1024 sc1')
        a('s_waitcnt vmcnt(0)')
        a(f'v_mfma_f32_16x16x32_bf16 v[40:43], v[32:35], {vr(SEL, 4)}, 0')
        a(f'v_mfma_f32_16x16x32_bf16 v[40:43], v[36:39], {vr(SEL, 4)}, v[40:43]')
        a('v_max3_u32 v24, v32, v33, v34')
        a('v_max3_u32 v25, v35, v36, v37')
        a('v_max3_u32 v24, v24, v38, v39')
        a('v_max_u32 v24, v24, v25')
        a('v_cmp_eq_u32 vcc, -1, v24')
        a(f's_cbranch_vccz {D}')
        G.spin_fail(L)
        a.label(D)
        a('v_add_f32 v40, v40, v41')
        a('v_add_f32 v42, v42, v43')
        a('v_add_f32 v40, v40, v42')
        a('v_mov_b32_dpp v41, v40 quad_perm:[1,0,3,2] row_mask:0xf bank_mask:0xf')
        a('v_cvt_pk_bf16_f32 v40, v40, v41')
        a('v_min_u32 v40, -2, v40')
        for i in range(4):
            a(f'v_mov_b32 v{44 + i}, -1')
        a('s_mov_b32 exec_lo, 0x00550055')
        a('s_mov_b32 exec_hi, 0x00550055')
        a(f'buffer_store_dword v40, {VM2S}, {WS}, s74 offen{sc}')
        a(f'buffer_store_dword v44, {VM2S}, {WS}, s75 offen{sc}')
        a('s_mov_b64 exec, -1')
        a(f'buffer_store_dwordx4 v[44:47], {VM1L}, {WS}, s73 offen{sc}')
        a(f'buffer_store_dwordx4 v[44:47], {VM1L}, {WS}, s73 offen offset:1024{sc}')
        a('s_add_u32 s9, s74, s67')
        a('s_add_u32 s10, s9, 4096')
        L, D = a.new_label('h2'), a.new_label('h2d')
        a.label(L)
        a(f'buffer_load_dwordx4 v[32:35], {V_L16}, {WS}, s9 offen sc1')
        a(f'buffer_load_dwordx4 v[36:39], {V_L16}, {WS}, s10 offen sc1')
        a('s_waitcnt vmcnt(0)')
        a('v_max3_u32 v24, v32, v33, v34')
        a('v_max3_u32 v25, v35, v36, v37')
        a('v_max3_u32 v24, v24, v38, v39')
        a('v_max_u32 v24, v24, v25')
        a('v_cmp_eq_u32 vcc, -1, v24')
        a(f's_cbranch_vccz {D}')
        G.spin_fail(L)
        a.label(D)
        a(f'v_add_u32 v25, s67, {VMS}')
        a('ds_write_b128 v25, v[32:35]')
        a('ds_write_b128 v25, v[36:39] offset:4096')
        a('s_add_u32 s68, s68, 1')
        a(f's_branch L_R_{tag}')
    a.label('L_R_done')
    a('s_waitcnt vmcnt(0)')
    G.store_flag('64', 's65', 'v24')
    a('s_endpgm')


def make_sel(G, SEL, t0, t1):
    a = G.a
    for p in range(4):
        a(f'v_mov_b32 {t0}, 0x3f80')
        a(f'v_mov_b32 {t1}, 0x3f800000')
        a(f'v_cmp_eq_u32 vcc, {2 * p}, {G.V_C}')
        a(f'v_cndmask_b32 v{SEL + p}, 0, {t0}, vcc')
        a(f'v_cmp_eq_u32 vcc, {2 * p + 1}, {G.V_C}')
        a(f'v_cndmask_b32 v{SEL + p}, v{SEL + p}, {t1}, vcc')


def load_x4_tiles(G, srd_r, voff, ksteps, row_bytes, raw, dst_of):
    a, vr = G.a, G.vr
    a(f's_mov_b32 s12, {G.SEL_LO}')
    a(f's_mov_b32 s13, {G.SEL_HI}')
    n = ksteps
    for k in range(n):
        for j in range(8):
            a(f's_mov_b32 s14, {row_bytes(k, j)}')
            a(f'buffer_load_dwordx4 {vr(raw + 32 * k + 4 * j, 4)}, {voff}, {srd_r}, s14 offen')
    for k in range(n):
        a(f's_waitcnt vmcnt({8 * (n - 1 - k)})')
        for t in range(8):
            for p in range(4):
                lo = raw + 32 * k + 4 * (2 * p) + (t >> 1)
                G.put(dst_of(k, t, p), f'v{lo + 4}', f'v{lo}', 's13' if t & 1 else 's12', f'v{14 + (p & 1)}')


def partial_epilogue(G, ACC, TMP, VST0, VST1, soff, sc):
    a, vr = G.a, G.vr
    for rt in range(2):
        for r in range(4):
            o = TMP + 4 * ((rt * 4 + r) & 3)
            for q in range(4):
                a(f'v_cvt_pk_bf16_f32 v{o + q}, v{ACC + ((2 * q) * 2 + rt) * 4 + r}, v{ACC + ((2 * q + 1) * 2 + rt) * 4 + r}')
            a(f'buffer_store_dwordx4 {vr(o, 4)}, {VST1 if rt else VST0}, {G.srd("WS")}, {soff} offen offset:{r * 64}{sc}')


def wait_flags2(G, voff, vt, s_target):
    a = G.a
    L, D = a.new_label('wf'), a.new_label('wfd')
    a.label(L)
    a(f'buffer_load_dwordx2 v[{vt}:{vt + 1}], {voff}, {G.srd("WS")}, 0 offen sc1')
    a('s_waitcnt vmcnt(0)')
    a(f'v_min_u32 v{vt}, v{vt}, v{vt + 1}')
    a(f'v_cmp_gt_u32 vcc, {s_target}, v{vt}')
    a(f's_cbranch_vccz {D}')
    G.spin_fail(L, 1)
    a.label(D)


def part_addrs(G, VST0, VST1, VRD, VCOL, t0, t1):
    a = G.a
    W, H, V_G, V_C = G.S_WAVE, G.S_MEM, G.V_G, G.V_C
    a(f'v_lshlrev_b32 {t0}, 15, {V_C}')
    a(f'v_lshl_add_u32 {t0}, {V_G}, 4, {t0}')
    a(f's_lshl_b32 s9, {H}, 10')
    a(f's_lshl_b32 s10, {W}, 8')
    a('s_add_u32 s9, s9, s10')
    a(f'v_add_u32 {VST0}, s9, {t0}')
    a(f'v_add_u32 {VST1}, 0x80000, {VST0}')
    a(f'v_lshlrev_b32 {t0}, 10, {V_G}')
    a(f'v_lshl_add_u32 {t0}, {V_C}, 4, {t0}')
    a(f's_lshl_b32 s9, {H}, 15')
    a('s_add_u32 s9, s9, s10')
    a(f'v_add_u32 {VRD}, s9, {t0}')
    a(f'v_and_b32 {t0}, 3, {V_C}')
    a(f'v_lshlrev_b32 {t0}, 6, {t0}')
    a(f'v_lshrrev_b32 {t1}, 2, {V_C}')
    a(f'v_lshl_add_u32 {t0}, {t1}, 4, {t0}')
    a(f'v_and_b32 {t1}, 1, {V_G}')
    a(f'v_lshl_add_u32 {t0}, {t1}, 3, {t0}')
    a(f'v_add_u32 {VCOL}, s10, {t0}')


def add_residual(G, ACC, RES, OUT):
    a = G.a
    a(f'v_cvt_pk_bf16_f32 v{OUT}, v{ACC}, v{ACC + 1}')
    a(f'v_cvt_pk_bf16_f32 v{OUT + 1}, v{ACC + 2}, v{ACC + 3}')
    for i in range(2):
        a(f'v_lshlrev_b32 v{ACC}, 16, v{OUT + i}')
        a(f'v_and_b32 v{ACC + 1}, 0xffff0000, v{OUT + i}')
        a(f'v_lshlrev_b32 v{ACC + 2}, 16, v{RES + i}')
        a(f'v_and_b32 v{ACC + 3}, 0xffff0000, v{RES + i}')
        a(f'v_add_f32 v{ACC}, v{ACC}, v{ACC + 2}')
        a(f'v_add_f32 v{ACC + 1}, v{ACC + 1}, v{ACC + 3}')
        a(f'v_cvt_pk_bf16_f32 v{OUT + i}, v{ACC}, v{ACC + 1}')


def role_AT(G):
    a, srd, vr, ar = G.a, G.srd, G.vr, G.ar
    W, H = G.S_WAVE, G.S_MEM
    V_LANE, V_G, V_C, V_L16, V_L4 = G.V_LANE, G.V_G, G.V_C, G.V_L16, G.V_L4
    WS = srd('WS')
    XS, QX, OX, HR = 0, 32768, 40960, 49152
    a.label('L_role_AT')
    a(f's_sub_u32 s64, {G.S_GRP}, 3')
    a('s_lshl_b32 s65, s64, 9')
    a(f's_lshl_b32 s9, {H}, 4')
    a('s_add_u32 s65, s65, s9')
    a(f's_lshl_b32 s9, {W}, 2')
    a('s_add_u32 s65, s65, s9')
    a(f's_add_u32 s65, s65, {G.ATP}')
    a('s_lshl_b32 s66, s64, 7')
    a(f's_lshl_b32 s9, {H}, 2')
    a('s_add_u32 s66, s66, s9')
    a(f's_add_u32 s66, s66, {G.HP}')
    G.store_flag('0', 's65', 'v6')
    G.store_flag('0', 's66', 'v6')
    G.publish_table('v6')
    if 'A' not in G.ROLES:
        a('s_endpgm')
        return
    a(f'v_lshlrev_b32 v6, 16, {V_G}')
    a(f'v_lshl_add_u32 v6, {V_C}, 2, v6')
    a(f's_lshl_b32 s9, {H}, 8')
    a(f's_lshl_b32 s10, {W}, 6')
    a('s_add_u32 s9, s9, s10')
    a('v_add_u32 v6, s9, v6')
    groups = []
    for k2 in range(8):
        loads, outs = [], []
        for u in range(2):
            kk = 2 * k2 + u
            for j in range(8):
                loads.append((srd('WQ'), 'v6', (32 * kk + j) * 8192))
            for tau in range(2):
                for p in range(4):
                    outs.append((f'a{(kk * 2 + tau) * 4 + p}', 8 * u + 2 * p + 1, 8 * u + 2 * p, tau))
        groups.append(dict(loads=loads, outs=outs))
    G.load_dword_tiles(groups, 16)
    a(f'v_lshlrev_b32 v6, 13, {V_G}')
    a(f'v_lshl_add_u32 v6, {V_C}, 4, v6')
    a(f's_lshl_b32 s9, {H}, 17')
    a(f's_lshl_b32 s10, {W}, 8')
    a('s_add_u32 s9, s9, s10')
    a('v_add_u32 v6, s9, v6')
    load_x4_tiles(G, srd('WO'), 'v6', 4, lambda k, j: (32 * k + j) * 1024, 16, lambda k, t, p: f'a{128 + (k * 8 + t) * 4 + p}')
    VST0, VST1, VRD, VCOL, VQW, VQR, VOW, VD0, VD1, VKF, VRF, VAF, VVX, VVM, VHN, VQI = (f'v{i}' for i in range(6, 22))
    SEL = 24
    part_addrs(G, VST0, VST1, VRD, VCOL, 'v28', 'v29')
    make_sel(G, SEL, 'v28', 'v29')
    a(f's_lshr_b32 s9, {W}, 1')
    a('s_lshl_b32 s9, s9, 11')
    a(f's_and_b32 s10, {W}, 1')
    a('s_lshl_b32 s11, s10, 9')
    a('s_add_u32 s9, s9, s11')
    a(f's_add_u32 s9, s9, {QX}')
    a(f'v_and_b32 v28, 1, {V_G}')
    a('v_lshlrev_b32 v28, 10, v28')
    a(f'v_lshrrev_b32 v29, 1, {V_G}')
    a('v_lshl_add_u32 v28, v29, 8, v28')
    a(f'v_lshl_add_u32 v28, {V_C}, 4, v28')
    a(f'v_add_u32 {VQW}, s9, v28')
    a('s_lshl_b32 s11, s10, 12')
    a(f's_add_u32 s9, s11, {QX}')
    a(f'v_add_u32 {VQR}, s9, {V_L16}')
    a(f's_lshr_b32 s9, {W}, 1')
    a('s_lshl_b32 s9, s9, 11')
    a('s_add_u32 s9, s9, s11')
    a(f's_add_u32 s9, s9, {OX}')
    a(f'v_add_u32 {VOW}, s9, {V_L16}')
    a(f's_lshl_b32 s67, {W}, 13')
    a(f'v_add_u32 {VD0}, s67, {V_L16}')
    a(f'v_add_u32 {VD1}, 4096, {VD0}')
    a(f'v_and_b32 v28, 3, {V_LANE}')
    a('v_lshlrev_b32 v28, 2, v28')
    a(f's_lshl_b32 s9, {H}, 7')
    a(f's_add_u32 s9, s9, {G.KVP}')
    a(f'v_add_u32 {VKF}, s9, v28')
    a(f'v_add_u32 {VRF}, {G.RP - G.KVP}, {VKF}')
    a('s_lshl_b32 s9, s64, 9')
    a(f's_add_u32 s9, s9, {G.ATP}')
    a(f'v_lshlrev_b32 v28, 3, {V_LANE}')
    a(f'v_add_u32 {VAF}, s9, v28')
    a(f's_lshr_b32 s9, {W}, 1')
    a('s_lshl_b32 s11, s9, 12')
    a('s_add_u32 s11, s11, 8192')
    a(f'v_add_u32 {VVX}, s11, {V_L16}')
    a('s_lshl_b32 s11, s9, 10')
    a('s_add_u32 s11, s11, 4096')
    a(f'v_add_u32 {VVM}, s11, v28')
    a(f'v_lshrrev_b32 v28, 2, {V_LANE}')
    a('v_lshlrev_b32 v28, 10, v28')
    a(f'v_and_b32 v29, 3, {V_LANE}')
    a('v_lshl_add_u32 v28, v29, 8, v28')
    a(f's_lshr_b32 s9, {H}, 4')
    a('s_lshl_b32 s9, s9, 14')
    a(f's_and_b32 s11, {H}, 15')
    a('s_lshl_b32 s11, s11, 4')
    a('s_add_u32 s9, s9, s11')
    a(f'v_add_u32 {VHN}, s9, v28')
    a('s_lshl_b32 s9, s10, 4')
    a(f'v_add_u32 v28, s9, {V_C}')
    a(f'v_lshlrev_b32 v29, 2, {V_G}')
    a(f'v_sub_u32 {VQI}, v28, v29')
    G.wait_table(V_L4, 'v28', 'v29')
    a('s_mov_b32 s68, s64')
    a('s_mov_b32 s69, 0')
    a(f's_mov_b32 s71, {CSC}')

    def dma(seg):
        a(f's_lshl_b32 s9, {seg}, 15')
        a('s_mov_b32 m0, s67')
        for i in range(4):
            a(f'buffer_load_dwordx4 {VD0}, {WS}, s9 offen offset:{1024 * i} sc1 lds')
        a('s_add_u32 s10, s67, 4096')
        a('s_mov_b32 m0, s10')
        for i in range(4):
            a(f'buffer_load_dwordx4 {VD1}, {WS}, s9 offen offset:{1024 * i} sc1 lds')

    dma('s68')
    a('s_waitcnt vmcnt(0)')
    a('s_barrier')
    a(f's_cmp_lg_u32 {G.S_FAR}, 0')
    a('s_cbranch_scc1 L_AT_far')
    for far in (0, 1):
        sc = ' sc1' if far else ''
        tag = 'far' if far else 'near'
        a.label(f'L_AT_{tag}')
        XF, QA = 32, 64
        for kk in range(3):
            for rt in range(2):
                a(f'ds_read_b128 {vr(XF + ((kk % 4) * 2 + rt) * 4, 4)}, {V_L16} offset:{rt * 16384 + kk * 1024}')
        for kk in range(16):
            if kk + 3 < 16:
                k2 = kk + 3
                for rt in range(2):
                    a(f'ds_read_b128 {vr(XF + ((k2 % 4) * 2 + rt) * 4, 4)}, {V_L16} offset:{rt * 16384 + k2 * 1024}')
            a(f's_waitcnt lgkmcnt({2 * min(3, 15 - kk)})')
            for tau in range(2):
                for rt in range(2):
                    d = vr(QA + (tau * 2 + rt) * 4, 4)
                    a(f'v_mfma_f32_16x16x32_bf16 {d}, {ar((kk * 2 + tau) * 4, 4)}, {vr(XF + ((kk % 4) * 2 + rt) * 4, 4)}, {d if kk else 0}')
        for rt in range(2):
            for r in range(4):
                a(f'v_cvt_pk_bf16_f32 v{80 + 4 * rt + r}, v{QA + rt * 4 + r}, v{QA + (2 + rt) * 4 + r}')
            a(f'ds_write_b128 {VQW}, {vr(80 + 4 * rt, 4)} offset:{rt * 4096}')
        a('s_waitcnt lgkmcnt(0)')
        a('s_barrier')
        a('s_add_u32 s72, s68, 3')
        dma('s72')
        QB, KX, VX, KM, VM = 32, 48, 80, 96, 112
        for k4 in range(4):
            a(f'ds_read_b128 {vr(QB + 4 * k4, 4)}, {VQR} offset:{k4 * 1024}')
        a('s_lshr_b32 s9, s68, 1')
        a('s_add_u32 s9, s9, 1')
        a('s_and_b32 s10, s68, 1')
        a('s_lshl_b32 s10, s10, 4')
        G.wait_flags(VKF, 'v28', 's9', 's10')
        a('s_lshl_b32 s9, s68, 5')
        a(f's_add_u32 s9, s9, {H}')
        a('s_lshl_b32 s73, s9, 13')
        a(f's_add_u32 s73, s73, {G.KMF}')
        a('s_lshl_b32 s9, s9, 14')
        a(f's_add_u32 s9, s9, {G.KVF}')
        a('s_add_u32 s10, s9, 4096')
        for i in range(8):
            a(f'buffer_load_dwordx4 {vr(KX + 4 * i, 4)}, {V_L16}, {WS}, {"s10" if i >= 4 else "s9"} offen offset:{(i & 3) * 1024} sc1')
        for i in range(4):
            a(f'buffer_load_dwordx4 {vr(VX + 4 * i, 4)}, {VVX}, {WS}, s9 offen offset:{i * 1024} sc1')
        a('s_waitcnt vmcnt(4) lgkmcnt(0)')
        SX, SM = 116, 124
        for k4 in range(4):
            for t in range(2):
                d = vr(SX + 4 * t, 4)
                a(f'v_mfma_f32_16x16x32_bf16 {d}, {vr(KX + 4 * (t * 4 + k4), 4)}, {vr(QB + 4 * k4, 4)}, {d if k4 else 0}')
        a('s_add_u32 s9, s68, 1')
        G.wait_flags(VRF, 'v28', 's9')
        for k4 in range(4):
            a(f'buffer_load_dwordx4 {vr(KM + 4 * k4, 4)}, {V_L16}, {WS}, s73 offen offset:{k4 * 1024} sc1')
        for u in range(2):
            a(f'buffer_load_dwordx2 {vr(VM + 2 * u, 2)}, {VVM}, {WS}, s73 offen offset:{u * 512} sc1')
        a('v_mov_b32 v29, 0xf149f2ca')
        for t in range(2):
            for r in range(4):
                a(f'v_cmp_ge_i32 vcc, {VQI}, {16 * t + r}' if False else f'v_cmp_le_i32 vcc, {16 * t + r}, {VQI}')
                a(f'v_cndmask_b32 v{SX + 4 * t + r}, v29, v{SX + 4 * t + r}, vcc')
        a('s_waitcnt vmcnt(0)')
        for k4 in range(4):
            d = vr(SM, 4)
            a(f'v_mfma_f32_16x16x32_bf16 {d}, {vr(KM + 4 * k4, 4)}, {vr(QB + 4 * k4, 4)}, {d if k4 else 0}')
        S = [f'v{SX + i}' for i in range(8)] + [f'v{SM}', f'v{SM + 1}']
        a(f'v_max3_f32 v28, {S[0]}, {S[1]}, {S[2]}')
        a(f'v_max3_f32 v29, {S[3]}, {S[4]}, {S[5]}')
        a(f'v_max3_f32 v28, v28, {S[6]}, {S[7]}')
        a(f'v_max3_f32 v29, v29, {S[8]}, {S[9]}')
        a('v_max_f32 v28, v28, v29')
        G.xrow_allreduce('v_max_f32', 'v28', 'v29')
        a('v_mul_f32 v28, s71, v28')
        for x in S:
            a(f'v_fma_f32 {x}, {x}, s71, -v28')
        for x in S:
            a(f'v_exp_f32 {x}, {x}')
        P, PM = 32, 36
        for p in range(4):
            a(f'v_cvt_pk_bf16_f32 v{P + p}, {S[2 * p]}, {S[2 * p + 1]}')
        a(f'v_cvt_pk_bf16_f32 v{PM}, {S[8]}, {S[9]}')
        a(f'v_mov_b32 v{PM + 1}, 0')
        for i in range(4):
            a(f'v_mov_b32 v{40 + 2 * i}, v{VM + i}')
            a(f'v_mov_b32 v{41 + 2 * i}, 0')
        OA = 48
        for i in range(4):
            a(f'v_mfma_f32_16x16x32_bf16 {vr(OA + 4 * i, 4)}, {vr(VX + 4 * i, 4)}, {vr(P, 4)}, 0')
        for i in range(4):
            d = vr(OA + 4 * i, 4)
            a(f'v_mfma_f32_16x16x16_bf16 {d}, {vr(40 + 2 * i, 2)}, {vr(PM, 2)}, {d}')
        a(f'v_add_f32 v28, {S[0]}, {S[1]}')
        a(f'v_add_f32 v29, {S[2]}, {S[3]}')
        for i in (4, 6, 8):
            a(f'v_add_f32 v28, v28, {S[i]}')
            a(f'v_add_f32 v29, v29, {S[i + 1]}')
        a('v_add_f32 v28, v28, v29')
        G.xrow_allreduce('v_add_f32', 'v28', 'v29')
        a('v_rcp_f32 v28, v28')
        for i in range(16):
            a(f'v_mul_f32 v{OA + i}, v{OA + i}, v28')
        for u in range(2):
            for r in range(4):
                a(f'v_cvt_pk_bf16_f32 v{64 + 4 * u + r}, v{OA + 8 * u + r}, v{OA + 8 * u + 4 + r}')
            a(f'ds_write_b128 {VOW}, {vr(64 + 4 * u, 4)} offset:{u * 1024}')
        a('s_waitcnt lgkmcnt(0)')
        a('s_barrier')
        OF, ACC = 32, 64
        for k4 in range(4):
            for rt in range(2):
                a(f'ds_read_b128 {vr(OF + (k4 * 2 + rt) * 4, 4)}, {V_L16} offset:{OX + rt * 4096 + k4 * 1024}')
        for k4 in range(4):
            a(f's_waitcnt lgkmcnt({6 - 2 * k4})')
            for t in range(8):
                for rt in range(2):
                    d = vr(ACC + (t * 2 + rt) * 4, 4)
                    a(f'v_mfma_f32_16x16x32_bf16 {d}, {ar(128 + (k4 * 8 + t) * 4, 4)}, {vr(OF + (k4 * 2 + rt) * 4, 4)}, {d if k4 else 0}')
        a('s_lshl_b32 s74, s68, 20')
        a(f's_add_u32 s74, s74, {G.AP}')
        partial_epilogue(G, ACC, 32, VST0, VST1, 's74', sc)
        a('s_add_u32 s69, s69, 1')
        a('s_lshl_b32 s75, s68, 5')
        a(f's_add_u32 s75, s75, {H}')
        a('s_lshl_b32 s75, s75, 10')
        a(f'buffer_load_dwordx2 v[30:31], {VCOL}, {srd("X")}, s75 offen')
        a('s_waitcnt vmcnt(0)')
        G.store_flag('s69', 's65', 'v28', sc1=bool(far))
        wait_flags2(G, VAF, 28, 's69')
        for l in range(8):
            a(f's_add_u32 s9, s74, {l * 4096}')
            a(f'buffer_load_dwordx4 {vr(32 + 4 * l, 4)}, {VRD}, {WS}, s9 offen sc1')
        for l in range(8):
            a(f's_waitcnt vmcnt({7 - l})')
            a(f'v_mfma_f32_16x16x32_bf16 v[64:67], {vr(SEL, 4)}, {vr(32 + 4 * l, 4)}, {"v[64:67]" if l else 0}')
        add_residual(G, 64, 30, 68)
        a('s_mov_b32 exec_hi, 0')
        a(f'ds_write_b64 {VCOL}, v[68:69] offset:{HR}')
        a('s_mov_b64 exec, -1')
        a('s_waitcnt lgkmcnt(0)')
        a('s_barrier')
        L = a.new_label('atw')
        a(f's_cmp_lg_u32 {W}, 0')
        a(f's_cbranch_scc1 {L}')
        a(f'ds_read_b128 v[32:35], {V_L16} offset:{HR}')
        a(f's_add_u32 s9, s75, {G.HH}')
        a('s_waitcnt lgkmcnt(0)')
        a(f'buffer_store_dwordx4 v[32:35], {V_L16}, {WS}, s9 offen sc1')
        G.layernorm_row(32, 36, 40, 48)
        a('s_lshl_b32 s9, s68, 15')
        a(f's_add_u32 s9, s9, {G.HN}')
        a(f'buffer_store_dwordx4 v[36:39], {VHN}, {WS}, s9 offen sc1')
        a('s_waitcnt vmcnt(0)')
        G.store_flag('s69', 's66', 'v28')
        a.label(L)
        a('s_add_u32 s68, s68, 3')
        a('s_cmp_lt_u32 s68, 64')
        a(f's_cbranch_scc1 L_AT_{tag}')
        a('s_endpgm')


def role_FF(G):
    a, srd, vr, ar = G.a, G.srd, G.vr, G.ar
    W, H = G.S_WAVE, G.S_MEM
    V_LANE, V_G, V_C, V_L16, V_L4 = G.V_LANE, G.V_G, G.V_C, G.V_L16, G.V_L4
    WS = srd('WS')
    a.label('L_role_FF')
    a(f's_sub_u32 s64, {G.S_GRP}, 6')
    a('s_lshl_b32 s65, s64, 9')
    a(f's_lshl_b32 s9, {H}, 4')
    a('s_add_u32 s65, s65, s9')
    a(f's_lshl_b32 s9, {W}, 2')
    a('s_add_u32 s65, s65, s9')
    a(f's_add_u32 s65, s65, {G.FFP}')
    a(f's_cmp_ge_u32 {H}, 22')
    a('s_cselect_b32 s9, 0x7fffffff, 0')
    G.store_flag('s9', 's65', 'v6')
    G.publish_table('v6')
    if 'F' not in G.ROLES:
        a('s_endpgm')
        return
    a(f's_cmp_ge_u32 {H}, 22')
    a('s_cbranch_scc1 L_FF_noweights')
    a('s_mov_b32 s9, 22016')
    a(f'v_mul_lo_u32 v6, s9, {V_G}')
    a(f'v_lshl_add_u32 v6, {V_C}, 2, v6')
    a(f's_lshl_b32 s9, {H}, 7')
    a(f's_lshr_b32 s10, {W}, 1')
    a('s_lshl_b32 s10, s10, 6')
    a('s_add_u32 s9, s9, s10')
    a('v_add_u32 v6, s9, v6')
    groups = []
    for kk in range(16):
        loads, outs = [], []
        for mat, nm in enumerate(('W1', 'W3')):
            for j in range(8):
                loads.append((srd(nm), 'v6', (32 * kk + j) * 2752))
            for tau in range(2):
                for p in range(4):
                    outs.append((f'a{(kk * 4 + mat * 2 + tau) * 4 + p}', 8 * mat + 2 * p + 1, 8 * mat + 2 * p, tau))
        groups.append(dict(loads=loads, outs=outs))
    G.load_dword_tiles(groups, 16)
    a(f'v_lshlrev_b32 v6, 13, {V_G}')
    a(f'v_lshl_add_u32 v6, {V_C}, 4, v6')
    a(f's_lshl_b32 s9, {H}, 16')
    a(f's_lshl_b32 s10, {W}, 8')
    a('s_add_u32 s9, s9, s10')
    a('v_add_u32 v6, s9, v6')
    load_x4_tiles(G, srd('W2'), 'v6', 2, lambda k, j: (32 * k + j) * 1024, 16, lambda k, t, p: f'v{192 + (k * 8 + t) * 4 + p}')
    a.label('L_FF_noweights')
    VST0, VST1, VRD, VCOL, VHF, VFF, VGW, VHL, VRD5 = (f'v{i}' for i in range(6, 15))
    SEL = 24
    part_addrs(G, VST0, VST1, VRD, VCOL, 'v28', 'v29')
    make_sel(G, SEL, 'v28', 'v29')
    a(f'v_and_b32 v28, 31, {V_LANE}')
    a('v_lshlrev_b32 v28, 2, v28')
    a(f'v_add_u32 {VHF}, {G.HP}, v28')
    a('s_lshl_b32 s9, s64, 9')
    a(f's_add_u32 s9, s9, {G.FFP}')
    a(f'v_lshlrev_b32 v28, 3, {V_LANE}')
    a(f'v_add_u32 {VFF}, s9, v28')
    a(f's_and_b32 s9, {W}, 1')
    a('s_lshl_b32 s10, s9, 11')
    a(f's_lshr_b32 s11, {W}, 1')
    a('s_lshl_b32 s11, s11, 10')
    a('s_add_u32 s10, s10, s11')
    a(f'v_add_u32 {VGW}, s10, {V_L16}')
    a('s_lshl_b32 s9, s9, 14')
    a(f'v_add_u32 {VHL}, s9, {V_L16}')
    a('v_mov_b32 v28, 0x7ffffff0')
    a(f'v_cmp_gt_u32 vcc, 2, {V_G}')
    a(f'v_cndmask_b32 {VRD5}, v28, {VRD}, vcc')
    G.wait_table(V_L4, 'v28', 'v29')
    a('s_mov_b32 s68, s64')
    a('s_mov_b32 s69, 0')
    a(f's_mov_b32 s71, {f32hex(-LOG2E)}')
    a(f's_cmp_lg_u32 {G.S_FAR}, 0')
    a('s_cbranch_scc1 L_FF_far')
    for far in (0, 1):
        sc = ' sc1' if far else ''
        tag = 'far' if far else 'near'
        a.label(f'L_FF_{tag}')
        a('s_lshl_b32 s74, s68, 20')
        a(f's_add_u32 s74, s74, {G.FP}')
        a('s_add_u32 s69, s69, 1')
        a(f's_cmp_ge_u32 {H}, 22')
        a(f's_cbranch_scc1 L_FF_red_{tag}')
        a('s_mul_i32 s9, s68, 43')
        a('s_lshr_b32 s9, s9, 7')
        a('s_mul_i32 s10, s9, 3')
        a('s_sub_u32 s10, s68, s10')
        a('s_lshl_b32 s10, s10, 7')
        a('s_add_u32 s9, s9, 1')
        G.wait_flags(VHF, 'v28', 's9', 's10')
        HF, GA = 32, 96
        a('s_lshl_b32 s9, s68, 15')
        a(f's_add_u32 s9, s9, {G.HN}')
        for kk in range(16):
            if kk and kk % 4 == 0:
                a('s_add_u32 s9, s9, 4096')
            a(f'buffer_load_dwordx4 {vr(HF + 4 * kk, 4)}, {VHL}, {WS}, s9 offen offset:{(kk & 3) * 1024} sc1')
        for kk in range(16):
            a(f's_waitcnt vmcnt({15 - kk})')
            for q in range(4):
                d = vr(GA + 4 * q, 4)
                a(f'v_mfma_f32_16x16x32_bf16 {d}, {ar((kk * 4 + q) * 4, 4)}, {vr(HF + 4 * kk, 4)}, {d if kk else 0}')
        for i in range(0, 16, 2):
            a(f'v_cvt_pk_bf16_f32 v28, v{GA + i}, v{GA + i + 1}')
            a(f'v_lshlrev_b32 v{GA + i}, 16, v28')
            a(f'v_and_b32 v{GA + i + 1}, 0xffff0000, v28')
        for i in range(8):
            a(f'v_mul_f32 v{32 + i}, s71, v{GA + i}')
        for i in range(8):
            a(f'v_exp_f32 v{32 + i}, v{32 + i}')
        for i in range(8):
            a(f'v_add_f32 v{32 + i}, 1.0, v{32 + i}')
        for i in range(8):
            a(f'v_rcp_f32 v{32 + i}, v{32 + i}')
        for i in range(8):
            a(f'v_mul_f32 v{32 + i}, v{32 + i}, v{GA + i}')
        for i in range(0, 8, 2):
            a(f'v_cvt_pk_bf16_f32 v28, v{32 + i}, v{32 + i + 1}')
            a(f'v_lshlrev_b32 v{32 + i}, 16, v28')
            a(f'v_and_b32 v{32 + i + 1}, 0xffff0000, v28')
        for i in range(8):
            a(f'v_mul_f32 v{32 + i}, v{32 + i}, v{GA + 8 + i}')
        for r in range(4):
            a(f'v_cvt_pk_bf16_f32 v{40 + r}, v{32 + r}, v{36 + r}')
        a(f'ds_write_b128 {VGW}, v[40:43]')
        a('s_waitcnt lgkmcnt(0)')
        a('s_barrier')
        OF, ACC = 32, 64
        for i in range(4):
            a(f'ds_read_b128 {vr(OF + 4 * i, 4)}, {V_L16} offset:{i * 1024}')
        a('s_waitcnt lgkmcnt(0)')
        for ch in range(2):
            for t in range(8):
                for rt in range(2):
                    d = vr(ACC + (t * 2 + rt) * 4, 4)
                    a(f'v_mfma_f32_16x16x32_bf16 {d}, {vr(192 + (ch * 8 + t) * 4, 4)}, {vr(OF + (rt * 2 + ch) * 4, 4)}, {d if ch else 0}')
        partial_epilogue(G, ACC, 32, VST0, VST1, 's74', sc)
        a('s_waitcnt vmcnt(0)')
        G.store_flag('s69', 's65', 'v28', sc1=bool(far))
        a.label(f'L_FF_red_{tag}')
        wait_flags2(G, VFF, 28, 's69')
        a('s_lshl_b32 s75, s68, 5')
        a(f's_add_u32 s75, s75, {H}')
        a('s_lshl_b32 s75, s75, 10')
        a(f's_add_u32 s9, s75, {G.HH}')
        a(f'buffer_load_dwordx2 v[30:31], {VCOL}, {WS}, s9 offen sc1')
        for l in range(6):
            a(f's_add_u32 s9, s74, {l * 4096}')
            a(f'buffer_load_dwordx4 {vr(32 + 4 * l, 4)}, {VRD5 if l == 5 else VRD}, {WS}, s9 offen sc1')
        for l in range(6):
            a(f's_waitcnt vmcnt({5 - l})')
            a(f'v_mfma_f32_16x16x32_bf16 v[64:67], {vr(SEL, 4)}, {vr(32 + 4 * l, 4)}, {"v[64:67]" if l else 0}')
        add_residual(G, 64, 30, 68)
        a('s_mov_b32 exec_hi, 0')
        a(f'buffer_store_dwordx2 v[68:69], {VCOL}, {srd("OUT")}, s75 offen')
        a('s_mov_b64 exec, -1')
        a('s_add_u32 s68, s68, 2')
        a('s_cmp_lt_u32 s68, 64')
        a(f's_cbranch_scc1 L_FF_{tag}')
        a('s_endpgm')
```

```python
import sys, os
sys.path.insert(0, os.path.dirname(os.path.abspath(__file__)))
from asmlib import Asm

NAME = 'sequential_preLN__memory_aug_recurrent_mem_tr__glu_gated_swiglu__prompt'
KNAME = NAME + '_kernel'

XN = 0x0000000
HN = 0x0200000
HH = 0x0400000
MB1 = 0x0600000
MB2 = 0x0680000
FLG = 0x0690000
TIM = 0x06A0000
KVF = 0x0800000
KMF = 0x2800000
AP = 0x3800000
FP = 0x7800000
KVP = FLG
RP = FLG + 0x1000
ATP = FLG + 0x2000
HP = FLG + 0x3000
FFP = FLG + 0x4000
WS_BYTES = 268435456
LDS_BYTES = 163840

S_WAVE, S_GRP, S_MEM, S_XCC, S_FAR, S_BUD = 's3', 's4', 's5', 's6', 's7', 's8'
SRD = dict(X=16, MEM0=20, WQ=24, WK=28, WV=32, WO=36, W1=40, W3=44, W2=48, OUT=52, DBG=56, WS=60)


def srd(n):
    b = SRD[n]
    return f's[{b}:{b + 3}]'


def vr(b, n=1):
    return f'v{b}' if n == 1 else f'v[{b}:{b + n - 1}]'


def ar(b, n=1):
    return f'a{b}' if n == 1 else f'a[{b}:{b + n - 1}]'


ROLES = os.environ.get('ROLES', 'KRAF')
FORCE_FAR = int(os.environ.get('FORCE_FAR', '0'))
STAMP = int(os.environ.get('STAMP', '0'))

a = Asm()

SEL_LO, SEL_HI = 0x05040100, 0x07060302


def spin_fail(retry, sleep=0):
    if sleep:
        a(f's_sleep {sleep}')
    a(f's_sub_u32 {S_BUD}, {S_BUD}, 1')
    a(f's_cbranch_scc0 {retry}')
    a(f's_mov_b32 {S_BUD}, 0')


def wait_flags(voff, vtmp, s_target, soff='0', sleep=1):
    L, D = a.new_label('wf'), a.new_label('wfd')
    a.label(L)
    a(f'buffer_load_dword {vtmp}, {voff}, {srd("WS")}, {soff} offen sc1')
    a('s_waitcnt vmcnt(0)')
    a(f'v_cmp_gt_u32 vcc, {s_target}, {vtmp}')
    a(f's_cbranch_vccz {D}')
    spin_fail(L, sleep)
    a.label(D)


def wait_table(vlane4, vt0, vt1):
    L, D = a.new_label('wt'), a.new_label('wtd')
    a.label(L)
    a(f'buffer_load_dword {vt0}, {vlane4}, {srd("DBG")}, 0 offen sc1')
    a('s_mov_b32 s9, 0x80808080')
    a('s_waitcnt vmcnt(0)')
    a(f'v_and_b32 {vt1}, s9, {vt0}')
    a(f'v_cmp_ne_u32 vcc, s9, {vt1}')
    a(f's_cbranch_vccz {D}')
    spin_fail(L, 4)
    a.label(D)
    a(f's_or_b32 s9, {S_XCC}, 0x80')
    a('s_mul_i32 s9, s9, 0x01010101')
    a(f'v_cmp_ne_u32 vcc, s9, {vt0}')
    a(f's_lshl_b32 s10, {S_GRP}, 3')
    a('s_lshr_b64 s[10:11], vcc, s10')
    a('s_and_b32 s10, s10, 0xff')
    a('s_cmp_lg_u32 s10, 0')
    a(f's_cselect_b32 {S_FAR}, 1, 0')
    if FORCE_FAR:
        a(f's_mov_b32 {S_FAR}, 1')


def publish_table(vt):
    a('s_waitcnt vmcnt(0)')
    a('s_barrier')
    L = a.new_label('pt')
    a(f's_cmp_lg_u32 {S_WAVE}, 0')
    a(f's_cbranch_scc1 {L}')
    a(f's_or_b32 s9, {S_XCC}, 0x80')
    a(f's_and_b32 s10, {S_MEM}, 3')
    a('s_lshl_b32 s10, s10, 3')
    a('s_lshl_b32 s9, s9, s10')
    a(f'v_mov_b32 {vt}, s9')
    a(f's_lshl_b32 s10, {S_GRP}, 5')
    a(f's_and_b32 s11, {S_MEM}, 0x1c')
    a('s_add_u32 s10, s10, s11')
    a('s_mov_b64 exec, 1')
    a(f'buffer_atomic_add {vt}, off, {srd("DBG")}, s10 sc1')
    a('s_mov_b64 exec, -1')
    a.label(L)


def store_flag(s_val, s_off, vt, sc1=True):
    a(f'v_mov_b32 {vt}, {s_val}')
    a('s_mov_b64 exec, 1')
    a(f'buffer_store_dword {vt}, off, {srd("WS")}, {s_off}{" sc1" if sc1 else ""}')
    a('s_mov_b64 exec, -1')


def wave_allreduce(op, v, t):
    for r in (8, 4, 2, 1):
        a(f'{op}_dpp {v}, {v}, {v} row_ror:{r} row_mask:0xf bank_mask:0xf')
    xrow_allreduce(op, v, t)


def xrow_allreduce(op, v, t):
    a(f'v_mov_b32 {t}, {v}')
    a(f'v_permlane16_swap_b32 {v}, {t}')
    a(f'{op} {v}, {v}, {t}')
    a(f'v_mov_b32 {t}, {v}')
    a(f'v_permlane32_swap_b32 {v}, {t}')
    a(f'{op} {v}, {v}, {t}')


def round_bf16(v):
    a(f'v_cvt_pk_bf16_f32 {v}, {v}, {v}')
    a(f'v_lshlrev_b32 {v}, 16, {v}')


def layernorm_row(src, dst, f, t):
    for i in range(4):
        a(f'v_lshlrev_b32 v{f + 2 * i}, 16, v{src + i}')
        a(f'v_and_b32 v{f + 2 * i + 1}, 0xffff0000, v{src + i}')
    s, q, u, m = f'v{t}', f'v{t + 1}', f'v{t + 2}', f'v{t + 3}'
    a(f'v_add_f32 {s}, v{f}, v{f + 1}')
    a(f'v_add_f32 {q}, v{f + 2}, v{f + 3}')
    a(f'v_add_f32 {u}, v{f + 4}, v{f + 5}')
    a(f'v_add_f32 {m}, v{f + 6}, v{f + 7}')
    a(f'v_add_f32 {s}, {s}, {q}')
    a(f'v_add_f32 {u}, {u}, {m}')
    a(f'v_add_f32 {s}, {s}, {u}')
    wave_allreduce('v_add_f32', s, u)
    a(f'v_mul_f32 {s}, 0x3b000000, {s}')
    a(f'v_sub_f32 {u}, v{f}, {s}')
    a(f'v_mul_f32 {q}, {u}, {u}')
    for i in range(1, 8):
        a(f'v_sub_f32 {u}, v{f + i}, {s}')
        a(f'v_fmac_f32 {q}, {u}, {u}')
    wave_allreduce('v_add_f32', q, u)
    a(f'v_mul_f32 {q}, 0x3b000000, {q}')
    round_bf16(q)
    a(f'v_add_f32 {q}, 0x3727c5ac, {q}')
    round_bf16(q)
    a(f'v_sqrt_f32 {q}, {q}')
    round_bf16(q)
    a(f'v_rcp_f32 {q}, {q}')
    round_bf16(s)
    for i in range(8):
        a(f'v_sub_f32 v{f + i}, v{f + i}, {s}')
    for i in range(4):
        a(f'v_cvt_pk_bf16_f32 v{dst + i}, v{f + 2 * i}, v{f + 2 * i + 1}')
    for i in range(4):
        a(f'v_lshlrev_b32 v{f + 2 * i}, 16, v{dst + i}')
        a(f'v_and_b32 v{f + 2 * i + 1}, 0xffff0000, v{dst + i}')
    for i in range(8):
        a(f'v_mul_f32 v{f + i}, v{f + i}, {q}')
    for i in range(4):
        a(f'v_cvt_pk_bf16_f32 v{dst + i}, v{f + 2 * i}, v{f + 2 * i + 1}')


V_LANE, V_G, V_C, V_L16, V_L4 = 'v1', 'v2', 'v3', 'v4', 'v5'


def prologue():
    a('s_cmp_ge_u32 s2, 256')
    a('s_cbranch_scc1 L_exit')
    a('s_load_dwordx16 s[64:79], s[0:1], 0')
    a('s_load_dwordx8 s[80:87], s[0:1], 64')
    a('s_load_dwordx4 s[88:91], s[0:1], 96')
    a('v_lshrrev_b32 v6, 6, v0')
    a(f'v_and_b32 {V_LANE}, 63, v0')
    a(f'v_readfirstlane_b32 {S_WAVE}, v6')
    a(f'v_lshrrev_b32 {V_G}, 4, {V_LANE}')
    a(f'v_and_b32 {V_C}, 15, {V_LANE}')
    a(f'v_lshlrev_b32 {V_L16}, 4, {V_LANE}')
    a(f'v_lshlrev_b32 {V_L4}, 2, {V_LANE}')
    a(f's_and_b32 {S_GRP}, s2, 7')
    a(f's_lshr_b32 {S_MEM}, s2, 3')
    a(f's_getreg_b32 {S_XCC}, hwreg(HW_REG_XCC_ID)')
    a(f's_and_b32 {S_XCC}, {S_XCC}, 15')
    a(f's_mov_b32 {S_FAR}, 1')
    a(f's_mov_b32 {S_BUD}, 300000')
    a('s_waitcnt lgkmcnt(0)')
    ptr = dict(X=(64, 2097152), MEM0=(66, 8192), WQ=(68, 4194304), WK=(70, 4194304), WV=(72, 4194304),
               WO=(74, 4194304), W1=(80, 1409024), W3=(82, 1409024), W2=(84, 1409024), OUT=(86, 2097152),
               DBG=(88, 256), WS=(90, WS_BYTES))
    for n, (p, sz) in ptr.items():
        b = SRD[n]
        a(f's_mov_b32 s{b}, s{p}')
        a(f's_and_b32 s{b + 1}, s{p + 1}, 0xffff')
        a(f's_mov_b32 s{b + 2}, {sz}')
        a(f's_mov_b32 s{b + 3}, 0x20000')
    a(f's_cmp_eq_u32 {S_GRP}, 0')
    a('s_cbranch_scc1 L_role_R')
    a(f's_cmp_le_u32 {S_GRP}, 2')
    a('s_cbranch_scc1 L_role_KV')
    a(f's_cmp_eq_u32 {S_GRP}, 7')
    a('s_cbranch_scc1 L_ln_done')
    a(f's_sub_u32 s9, {S_GRP}, 3')
    a('s_lshl_b32 s9, s9, 5')
    a(f's_add_u32 s9, s9, {S_MEM}')
    a('s_lshl_b32 s10, s9, 14')
    a(f's_lshl_b32 s11, {S_WAVE}, 12')
    a('s_add_u32 s11, s11, s10')
    for i in range(4):
        a(f'buffer_load_dwordx4 {vr(16 + 4 * i, 4)}, {V_L16}, {srd("X")}, s11 offen offset:{1024 * i}')
    a(f'v_lshrrev_b32 v6, 2, {V_LANE}')
    a('v_lshlrev_b32 v6, 10, v6')
    a(f'v_and_b32 v7, 3, {V_LANE}')
    a('v_lshl_add_u32 v6, v7, 8, v6')
    a(f's_lshl_b32 s11, {S_WAVE}, 6')
    a('s_add_u32 s11, s11, s10')
    for i in range(4):
        a('s_waitcnt vmcnt(3)')
        layernorm_row(16 + 4 * i, 32 + 4 * i, 48, 56)
        a(f'buffer_store_dwordx4 {vr(32 + 4 * i, 4)}, v6, {srd("WS")}, s11 offen offset:{16 * i} sc1')
    a.label('L_ln_done')
    a(f's_cmp_le_u32 {S_GRP}, 5')
    a('s_cbranch_scc1 L_role_AT')
    a('s_branch L_role_FF')


def put(dst, src_hi, src_lo, sel, tmp):
    if dst.startswith('a'):
        a(f'v_perm_b32 {tmp}, {src_hi}, {src_lo}, {sel}')
        a(f'v_accvgpr_write_b32 {dst}, {tmp}')
    else:
        a(f'v_perm_b32 {dst}, {src_hi}, {src_lo}, {sel}')


def load_dword_tiles(groups, pool_base, depth=3):
    n = len(groups)
    nbuf = depth + 1
    a(f's_mov_b32 s12, {SEL_LO}')
    a(f's_mov_b32 s13, {SEL_HI}')

    def issue(i):
        base = pool_base + 16 * (i % nbuf)
        for j, (sr, voff, so) in enumerate(groups[i]['loads']):
            a(f's_mov_b32 s14, {so}')
            a(f'buffer_load_dword v{base + j}, {voff}, {sr}, s14 offen')

    for i in range(min(depth, n)):
        issue(i)
    for i in range(n):
        if i + depth < n:
            issue(i + depth)
        left = min(depth, n - 1 - i)
        a(f's_waitcnt vmcnt({16 * left})')
        base = pool_base + 16 * (i % nbuf)
        tmps = [f'v{pool_base + 16 * nbuf}', f'v{pool_base + 16 * nbuf + 1}']
        for k, (dst, hi, lo, sel) in enumerate(groups[i]['outs']):
            put(dst, f'v{base + hi}', f'v{base + lo}', 's13' if sel else 's12', tmps[k & 1])


def role_KV():
    a.label('L_role_KV')
    a(f's_sub_u32 s64, {S_GRP}, 1')
    a(f's_lshl_b32 s65, {S_MEM}, 7')
    a('s_lshl_b32 s9, s64, 4')
    a('s_add_u32 s65, s65, s9')
    a(f's_lshl_b32 s9, {S_WAVE}, 2')
    a('s_add_u32 s65, s65, s9')
    a(f's_add_u32 s65, s65, {KVP}')
    store_flag('0', 's65', 'v6')
    publish_table('v6')
    if 'K' not in ROLES:
        a('s_endpgm')
        return
    a(f's_cmp_ge_u32 {S_WAVE}, 2')
    for i in range(2):
        a(f's_cselect_b32 s{68 + i}, s{SRD["WV"] + i}, s{SRD["WK"] + i}')
    a('s_mov_b32 s70, 4194304')
    a('s_mov_b32 s71, 0x20000')
    a(f's_and_b32 s66, {S_WAVE}, 1')
    a(f'v_lshlrev_b32 v6, 16, {V_G}')
    a(f's_lshl_b32 s9, {S_MEM}, 8')
    a('s_lshl_b32 s10, s66, 7')
    a('s_add_u32 s9, s9, s10')
    a('v_add_u32 v6, s9, v6')
    a(f's_cmp_ge_u32 {S_WAVE}, 2')
    a('s_cselect_b32 s9, 2, 3')
    a('s_cselect_b32 s10, 64, 4')
    a(f'v_lshlrev_b32 v7, s9, {V_C}')
    a('v_add_u32 v6, v6, v7')
    a('v_add_u32 v7, s10, v6')
    groups = []
    for kk in range(16):
        loads, outs = [], []
        for j in range(8):
            loads.append(('s[68:71]', 'v6', (32 * kk + j) * 8192))
        for j in range(8):
            loads.append(('s[68:71]', 'v7', (32 * kk + j) * 8192))
        for t in range(4):
            for p in range(4):
                o = 8 * (t >> 1)
                outs.append((f'a{(kk * 4 + t) * 4 + p}', o + 2 * p + 1, o + 2 * p, t & 1))
        groups.append(dict(loads=loads, outs=outs))
    load_dword_tiles(groups, 16)
    wait_table(V_L4, 'v8', 'v9')
    a(f's_lshl_b32 s67, {S_WAVE}, 13')
    a(f'v_add_u32 v8, s67, {V_L16}')
    a('v_add_u32 v9, 4096, v8')
    a('s_lshl_b32 s72, s64, 15')
    a('s_lshl_b32 s73, s64, 19')
    a(f's_lshl_b32 s9, {S_MEM}, 14')
    a('s_add_u32 s73, s73, s9')
    a(f's_add_u32 s73, s73, {KVF}')
    a(f's_cmp_ge_u32 {S_WAVE}, 2')
    a('s_cselect_b32 s9, 12, 11')
    a('s_cselect_b32 s10, 8192, 0')
    a('s_lshl_b32 s9, s66, s9')
    a('s_add_u32 s9, s9, s10')
    a(f'v_add_u32 v10, s9, {V_L16}')
    a('v_add_u32 v11, 4096, v10')
    a('s_mov_b32 s74, 0')
    a('s_mov_b32 s75, 0')

    def dma():
        a('s_add_u32 s9, s75, s67')
        a('s_mov_b32 m0, s9')
        for i in range(4):
            a(f'buffer_load_dwordx4 v8, {srd("WS")}, s72 offen offset:{1024 * i} sc1 lds')
        a('s_add_u32 s9, s9, 4096')
        a('s_mov_b32 m0, s9')
        for i in range(4):
            a(f'buffer_load_dwordx4 v9, {srd("WS")}, s72 offen offset:{1024 * i} sc1 lds')
        a('s_add_u32 s72, s72, 0x10000')
        a('s_xor_b32 s75, s75, 0x8000')

    dma()
    a('s_waitcnt vmcnt(0)')
    a(f's_cmp_ge_u32 {S_WAVE}, 2')
    a('s_cbranch_scc1 L_kv_V')
    for isV in (0, 1):
        L = 'L_kv_V' if isV else 'L_kv_K'
        a.label(L)
        a('s_waitcnt vmcnt(4)')
        a('s_barrier')
        a('s_max_u32 s9, s74, 1')
        a('s_sub_u32 s9, s9, 1')
        store_flag('s9', 's65', 'v12')
        a('s_xor_b32 s9, s75, 0x8000')
        a(f'v_add_u32 v13, s9, {V_L16}')
        dma()
        ACC = 64
        XF = 16
        for kk in range(3):
            for rt in range(2):
                a(f'ds_read_b128 {vr(XF + ((kk % 4) * 2 + rt) * 4, 4)}, v13 offset:{rt * 16384 + kk * 1024}')
        for kk in range(16):
            if kk + 3 < 16:
                k2 = kk + 3
                for rt in range(2):
                    a(f'ds_read_b128 {vr(XF + ((k2 % 4) * 2 + rt) * 4, 4)}, v13 offset:{rt * 16384 + k2 * 1024}')
            left = 2 * min(3, 15 - kk)
            a(f's_waitcnt lgkmcnt({left})')
            for t in range(4):
                for rt in range(2):
                    d = vr(ACC + (t * 2 + rt) * 4, 4)
                    w = ar((kk * 4 + t) * 4, 4)
                    x = vr(XF + ((kk % 4) * 2 + rt) * 4, 4)
                    c = d if kk else '0'
                    if isV:
                        a(f'v_mfma_f32_16x16x32_bf16 {d}, {x}, {w}, {c}')
                    else:
                        a(f'v_mfma_f32_16x16x32_bf16 {d}, {w}, {x}, {c}')
        D = lambda t, rt, r: f'v{ACC + (t * 2 + rt) * 4 + r}'
        O = 96
        if not isV:
            for rt in range(2):
                for cp in range(2):
                    o = O + (rt * 2 + cp) * 4
                    a(f'v_cvt_pk_bf16_f32 v{o}, {D(0, rt, 2 * cp)}, {D(1, rt, 2 * cp)}')
                    a(f'v_cvt_pk_bf16_f32 v{o + 1}, {D(2, rt, 2 * cp)}, {D(3, rt, 2 * cp)}')
                    a(f'v_cvt_pk_bf16_f32 v{o + 2}, {D(0, rt, 2 * cp + 1)}, {D(1, rt, 2 * cp + 1)}')
                    a(f'v_cvt_pk_bf16_f32 v{o + 3}, {D(2, rt, 2 * cp + 1)}, {D(3, rt, 2 * cp + 1)}')
                    a(f'buffer_store_dwordx4 {vr(o, 4)}, {"v11" if rt else "v10"}, {srd("WS")}, s73 offen offset:{cp * 1024} sc1')
        else:
            for t in range(4):
                o = O + t * 4
                a(f'v_cvt_pk_bf16_f32 v{o}, {D(t, 0, 0)}, {D(t, 0, 1)}')
                a(f'v_cvt_pk_bf16_f32 v{o + 1}, {D(t, 0, 2)}, {D(t, 0, 3)}')
                a(f'v_cvt_pk_bf16_f32 v{o + 2}, {D(t, 1, 0)}, {D(t, 1, 1)}')
                a(f'v_cvt_pk_bf16_f32 v{o + 3}, {D(t, 1, 2)}, {D(t, 1, 3)}')
                a(f'buffer_store_dwordx4 {vr(o, 4)}, v10, {srd("WS")}, s73 offen offset:{t * 1024} sc1')
        a('s_add_u32 s73, s73, 0x100000')
        a('s_add_u32 s74, s74, 1')
        a('s_cmp_lt_u32 s74, 32')
        a(f's_cbranch_scc1 {L}')
        a('s_waitcnt vmcnt(0)')
        store_flag('32', 's65', 'v12')
        a('s_endpgm')


from roles import role_R, role_AT, role_FF


def build():
    hdr = open(os.path.join(os.path.dirname(os.path.abspath(__file__)), '..', 'cdna_kernels', NAME + '.s.ref')).read()
    head = []
    for ln in hdr.split('\n'):
        if not ln.startswith(';'):
            break
        if '@launch' in ln:
            ln = f'; @launch grid=(256,1,1) block=(256,1,1) lds={LDS_BYTES}'
        head.append(ln)
    prologue()
    role_KV()
    role_R(sys.modules[__name__])
    role_AT(sys.modules[__name__])
    role_FF(sys.modules[__name__])
    a.label('L_exit')
    a('s_endpgm')
    body = a.finish()
    out = '\n'.join(head) + '\n'
    out += f'''.amdgcn_target "amdgcn-amd-amdhsa--gfx950"
.text
.globl {KNAME}
.p2align 8
.type {KNAME},@function
{KNAME}:
{body}.section .rodata,"a"
.p2align 6
.amdhsa_kernel {KNAME}
  .amdhsa_next_free_vgpr 512
  .amdhsa_next_free_sgpr 102
  .amdhsa_accum_offset 256
  .amdhsa_group_segment_fixed_size 0
  .amdhsa_kernarg_size 112
  .amdhsa_user_sgpr_count 2
  .amdhsa_user_sgpr_kernarg_segment_ptr 1
  .amdhsa_system_sgpr_workgroup_id_x 1
  .amdhsa_float_denorm_mode_32 3
.end_amdhsa_kernel
'''
    return out


if __name__ == '__main__':
    dst = sys.argv[1] if len(sys.argv) > 1 else os.path.join(os.path.dirname(os.path.abspath(__file__)), '..', 'cdna_kernels', NAME + '.s')
    txt = build()
    open(dst, 'w').write(txt)
    print('wrote', dst, len(txt), 'bytes;', a.nops_inserted, 'nops inserted')
```
